```python
import torch

def _softmax(x, axis=-1):
    return torch.softmax(x, dim=axis)
def _gelu(x):
    return torch.nn.functional.gelu(x, approximate="tanh")
def _silu(x):
    return torch.nn.functional.silu(x)
def _sigmoid(x):
    return torch.sigmoid(x)
def _layernorm(x, axis=-1, eps=1e-5):
    m = x.mean(dim=axis, keepdim=True)
    v = x.var(dim=axis, keepdim=True, unbiased=False)
    return (x - m) / torch.sqrt(v + eps)
def _scatter_add(tgt, idx, src, axis=0):
    return tgt.clone().index_add_(axis, idx, src)
def _segment_sum(src, seg, n):
    out = torch.zeros((n,) + src.shape[1:], dtype=src.dtype)
    return out.index_add_(0, seg, src)
def _pad(x, pw):
    flat = tuple(v for pair in reversed(pw) for v in pair)
    return torch.nn.functional.pad(x, flat)

kernel_name = 'concat_heads__softmax_full_mha__mha_block__prompt'

def setup_inputs():

    _w = (lambda a: (lambda t: t.to(torch.bfloat16) if t.is_floating_point() else t)(torch.as_tensor(a)))
    def _A_setup():
        B, S, D = 1, 2048, 1024
        return {
            "x": _w((lambda *s: torch.randn(*s, dtype=torch.bfloat16) * 0.2)(B, S, D)),
            "wqkv": _w((lambda *s: torch.randn(*s, dtype=torch.bfloat16) * 0.2)(D, 3 * D)),
            "wo": _w((lambda *s: torch.randn(*s, dtype=torch.bfloat16) * 0.05)(D, D)),
        }
    _A_in = _A_setup()

    def _B_setup():
        B, S, D, H = 1, 2048, 1024, 32
        return {
            "x": _w((lambda *s: torch.randn(*s, dtype=torch.bfloat16) * 0.2)(B, S, D)),
            "wqkv": _w((lambda *s: torch.randn(*s, dtype=torch.bfloat16) * 0.2)(D, 3 * D)),
            "wo": _w((lambda *s: torch.randn(*s, dtype=torch.bfloat16) * 0.05)(D, D)),
        }
    _B_in = _B_setup()

    return {
        "A_x": _A_in["x"],
        "A_wqkv": _A_in["wqkv"],
        "A_wo": _A_in["wo"],
        "B_x": _B_in["x"],
        "B_wqkv": _B_in["wqkv"],
        "B_wo": _B_in["wo"],
    }

def reference(A_x, A_wqkv, A_wo, B_x, B_wqkv, B_wo):
    def _A_ref(x, wqkv, wo):
        B, S, D = x.shape
        H = 32; Dh = D // H
        qkv = (lambda x, *d: x.permute(*d))((x @ wqkv).reshape(B, S, 3, H, Dh), 2, 0, 3, 1, 4)
        q, k, v = qkv[0], qkv[1], qkv[2]
        scale = Dh ** -0.5
        scores = torch.einsum("bhqd,bhkd->bhqk", q, k) * scale
        p = _softmax(scores, axis=-1)
        o = torch.einsum("bhqk,bhkd->bhqd", p, v)
        return (lambda x, *d: x.permute(*d))(o, 0, 2, 1, 3).reshape(B, S, D) @ wo

    def _B_ref(x, wqkv, wo):
        B, S, D = x.shape
        H = 32
        Dh = D // H
        qkv = (lambda x, *d: x.permute(*d))((x @ wqkv).reshape(B, S, 3, H, Dh), 2, 0, 3, 1, 4)
        q, k, v = qkv[0], qkv[1], qkv[2]
        scores = torch.einsum("bhqd,bhkd->bhqk", q, k) * (Dh ** -0.5)
        p = _softmax(scores, axis=-1)
        o = torch.einsum("bhqk,bhkd->bhqd", p, v)
        return (lambda x, *d: x.permute(*d))(o, 0, 2, 1, 3).reshape(B, S, D) @ wo

    a = _A_ref(A_x, A_wqkv, A_wo)
    b = _B_ref(B_x, B_wqkv, B_wo)
    return torch.concatenate([a, b], axis=-1)
```

```python
from common import *

def gen_attn(name="attn_kernel", use_smfmac=True, opts=None):
    opts = opts or {}
    a = Asm()
    kernel_header(a, name)
    R = RegAlloc(2)
    vLds = R.alloc(); vDma = R.alloc(); vIdx = R.alloc(); vT0 = R.alloc(); vT1 = R.alloc(); vOut = R.alloc()
    vSel = R.alloc(4, 4)
    Q = [[R.alloc(4, 4) for c in range(2)] for q in range(2)]
    NEG = [R.alloc(16, 4) for q in range(2)]
    S = [R.alloc(16, 4) for q in range(2)]
    P = [R.alloc(8, 4) for q in range(2)]
    K = [[R.alloc(4, 4) for c in range(2)] for b in range(2)]
    V = [[R.alloc(4, 4) for c in range(2)] for b in range(2)]
    O = [R.alloc(16, 4) for q in range(2)]
    L = [R.alloc(4, 4) for q in range(2)]
    nv = R.n
    sWS = 4
    sKV = 8
    sQ = 12
    sWave = 16; sHead = 17; sProb = 18; sM = 19; sT = 20; sT2 = 21
    sM0 = 22; sOff = 23; sCnt = 24; sQT = 25; sJ = 26; sIdx = 27
    sWo = 28
    sWp = 44

    a("s_cmp_ge_u32 s2, 256")
    a(f"s_cbranch_scc1 {name}_end")
    if opts.get("stamp"):
        a("s_memrealtime s[32:33]")
    a(f"s_load_dwordx2 {sr(sWS,2)}, s[0:1], 64")
    a("v_lshrrev_b32 v1, 6, v0")
    a("v_and_b32 v0, 63, v0")
    a(f"v_readfirstlane_b32 s{sWave}, v1")
    a(f"s_and_b32 s{sT}, s2, 7")
    a(f"s_lshr_b32 s{sProb}, s{sT}, 2")
    a(f"s_and_b32 s{sT}, s{sT}, 3")
    a(f"s_lshl_b32 s{sT}, s{sT}, 2")
    a(f"s_lshr_b32 s{sT2}, s2, 3")
    a(f"s_lshr_b32 s{sM}, s{sT2}, 2")
    a(f"s_and_b32 s{sT2}, s{sT2}, 3")
    a(f"s_add_u32 s{sT}, s{sT}, s{sT2}")
    a(f"s_mov_b32 s{sJ}, s{sT}")
    a(f"s_mul_i32 s{sT2}, s{sProb}, 24")
    a(f"s_add_u32 s0, s0, s{sT2}")
    a("s_addc_u32 s1, s1, 0")
    a(f"s_load_dwordx2 {sr(sWp,2)}, s[0:1], 16")
    a(f"s_lshl_b32 s{sIdx}, s{sM}, 4")
    a(f"s_add_u32 s{sIdx}, s{sIdx}, s{sJ}")
    a(f"s_lshl_b32 s{sIdx}, s{sIdx}, 3")
    a(f"s_add_u32 s{sIdx}, s{sIdx}, s{sWave}")
    a(f"s_lshl_b32 s{sHead}, s{sT}, 1")
    a(f"s_lshr_b32 s{sT2}, s{sWave}, 2")
    a(f"s_add_u32 s{sHead}, s{sHead}, s{sT2}")
    a(f"s_lshl_b32 s{sM0}, s{sT2}, 16")
    a(f"s_and_b32 s{sT}, s{sWave}, 3")
    a(f"s_lshl_b32 s{sT}, s{sT}, 10")
    a(f"s_add_u32 s{sM0}, s{sM0}, s{sT}")
    a(f"v_lshlrev_b32 v{vOut}, 4, v0")
    a(f"v_add_u32 v{vDma}, s{sT}, v{vOut}")
    a(f"s_lshl_b32 s{sT2}, s{sT2}, 16")
    a(f"v_add_u32 v{vLds}, s{sT2}, v{vOut}")
    a(f"s_and_b32 s{sT}, s{sWave}, 3")
    a(f"s_lshl_b32 s{sT}, s{sT}, 1")
    a(f"s_lshl_b32 s{sQT}, s{sM}, 3")
    a(f"s_add_u32 s{sQT}, s{sQT}, s{sT}")
    a(f"s_lshl_b32 s{sT}, s{sProb}, 5")
    a(f"s_add_u32 s{sT}, s{sT}, s{sHead}")
    a("s_waitcnt lgkmcnt(0)")
    a(f"s_lshl_b32 s{sT2}, s{sT}, 18")
    a(f"s_add_u32 s{sT2}, s{sT2}, {WS_KV}")
    a(f"s_add_u32 s{sKV}, s{sWS}, s{sT2}")
    a(f"s_addc_u32 s{sKV+1}, s{sWS+1}, 0")
    a(f"s_mov_b32 s{sKV+2}, {256*1024}")
    a(f"s_mov_b32 s{sKV+3}, 0x20000")
    a(f"s_lshl_b32 s{sT2}, s{sT}, 17")
    a(f"s_lshl_b32 s{sT}, s{sQT}, 11")
    a(f"s_add_u32 s{sT2}, s{sT2}, s{sT}")
    a(f"s_add_u32 s{sT2}, s{sT2}, {WS_Q}")
    a(f"s_add_u32 s{sQ}, s{sWS}, s{sT2}")
    a(f"s_addc_u32 s{sQ+1}, s{sWS+1}, 0")
    a(f"s_mov_b32 s{sQ+2}, 4096")
    a(f"s_mov_b32 s{sQ+3}, 0x20000")
    a(f"s_mov_b32 s{sOff}, 0")
    def dma(slot):
        a(f"s_add_u32 m0, s{sM0}, {slot*4096}")
        a("s_nop 0")
        a(f"buffer_load_dwordx4 v{vDma}, {sr(sKV,4)}, s{sOff} offen lds")
        a(f"s_add_u32 s{sOff}, s{sOff}, 4096")
    for q in range(2):
        for c in range(2):
            a(f"buffer_load_dwordx4 {vr(Q[q][c],4)}, v{vOut}, {sr(sQ,4)}, 0 offen offset:{q*2048+c*1024}")
    for t in range(4):
        dma(t)
    a(f"s_lshr_b32 s{sT}, s{sIdx}, 5")
    a(f"s_lshl_b32 s{sT}, s{sT}, 16")
    a(f"s_and_b32 s{sT2}, s{sIdx}, 31")
    a(f"s_lshl_b32 s{sT2}, s{sT2}, 6")
    a(f"s_add_u32 s{sT}, s{sT}, s{sT2}")
    a(f"s_add_u32 s{sWo}, s{sWp}, s{sT}")
    a(f"s_addc_u32 s{sWo+1}, s{sWp+1}, 0")
    a(f"s_sub_u32 s{sWo+2}, {1024*2048}, s{sT}")
    a(f"s_mov_b32 s{sWo+3}, 0x20000")
    a(f"v_lshrrev_b32 v{vT0}, 2, v0")
    a(f"v_lshlrev_b32 v{vT0}, 11, v{vT0}")
    a(f"v_and_b32 v{vT1}, 3, v0")
    a(f"v_lshl_add_u32 v{vT0}, v{vT1}, 4, v{vT0}")
    a(f"s_lshl_b32 s{sT}, s{sWave}, 11")
    a(f"s_add_u32 m0, s{sT}, 131072")
    a(f"s_mov_b32 s{sT2}, {16*2048}")
    a(f"buffer_load_dwordx4 v{vT0}, {sr(sWo,4)}, 0 offen lds")
    a(f"s_add_u32 m0, s{sT}, {131072+1024}")
    a("s_nop 0")
    a(f"buffer_load_dwordx4 v{vT0}, {sr(sWo,4)}, s{sT2} offen lds")
    for t in range(4, 9):
        dma(t)
    if use_smfmac:
        a(f"v_bfe_u32 v{vT0}, v0, 2, 1")
        a(f"v_cmp_eq_u32 vcc, 0, v{vT0}")
        a(f"v_mov_b32 v{vT1}, 0x3f803f80")
        a("s_nop 1")
        a(f"v_cndmask_b32 v{vSel}, 0, v{vT1}, vcc")
        a(f"v_cndmask_b32 v{vSel+1}, 0, v{vT1}, vcc")
        a(f"v_cndmask_b32 v{vSel+2}, v{vT1}, 0, vcc")
        a(f"v_cndmask_b32 v{vSel+3}, v{vT1}, 0, vcc")
        if opts.get("rows4"):
            a(f"v_and_b32 v{vT0}, 10, v0")
            a(f"v_cmp_eq_u32 vcc, 0, v{vT0}")
            a("s_nop 1")
            for i in range(4):
                a(f"v_cndmask_b32 v{vSel+i}, 0, v{vSel+i}, vcc")
        a(f"v_and_b32 v{vT0}, 1, v0")
        a(f"v_cmp_eq_u32 vcc, 0, v{vT0}")
        a(f"v_mov_b32 v{vT0}, 0xeeee")
        a(f"v_mov_b32 v{vT1}, 0x4444")
        a("s_nop 0")
        a(f"v_cndmask_b32 v{vIdx}, v{vT0}, v{vT1}, vcc")
    else:
        a(f"v_bfe_u32 v{vT0}, v0, 2, 1")
        a(f"v_bfe_u32 v{vT1}, v0, 4, 1")
        a(f"v_cmp_eq_u32 vcc, v{vT0}, v{vT1}")
        a(f"v_mov_b32 v{vT1}, 0x3f803f80")
        a("s_nop 1")
        for i in range(4):
            a(f"v_cndmask_b32 v{vSel+i}, 0, v{vT1}, vcc")
    for q in range(2):
        for i in range(16):
            a(f"v_mov_b32 v{O[q]+i}, 0")
        for i in range(4):
            a(f"v_mov_b32 v{L[q]+i}, 0")
    for i in range(8):
        a(f"v_mov_b32 v{P[1]+i}, 0")
    for c in range(2):
        for i in range(4):
            a(f"v_mov_b32 v{V[1][c]+i}, 0")
    a("s_waitcnt vmcnt(7)")
    a("s_barrier")
    def rdK(t):
        slot = t % 16
        for c in range(2):
            a(f"ds_read_b128 {vr(K[t%2][c],4)}, v{vLds} offset:{slot*4096+c*1024}")
    def rdV(t):
        slot = t % 16
        for c in range(2):
            a(f"ds_read_b128 {vr(V[t%2][c],4)}, v{vLds} offset:{slot*4096+2048+c*1024}")
    rdK(0)
    rdV(0)
    a("s_waitcnt lgkmcnt(2)")
    MF = "v_mfma_f32_32x32x16_bf16"
    for q in range(2):
        a(f"{MF} {vr(S[q],16)}, {vr(K[0][0],4)}, {vr(Q[q][0],4)}, 0")
        a(f"{MF} {vr(S[q],16)}, {vr(K[0][1],4)}, {vr(Q[q][1],4)}, {vr(S[q],16)}")
    a("s_nop 15")
    for q in range(2):
        s = S[q]
        a(f"v_max3_f32 v{vT0}, v{s}, v{s+1}, v{s+2}")
        for i in range(3, 15, 2):
            a(f"v_max3_f32 v{vT0}, v{vT0}, v{s+i}, v{s+i+1}")
        a(f"v_max_f32 v{vT0}, v{vT0}, v{s+15}")
        a(f"v_mov_b32 v{vT1}, v{vT0}")
        a("s_nop 1")
        a(f"v_permlane32_swap_b32 v{vT0}, v{vT1}")
        a("s_nop 1")
        a(f"v_max_f32 v{vT0}, v{vT0}, v{vT1}")
        for i in range(16):
            a(f"v_sub_f32 v{NEG[q]+i}, 0, v{vT0}")
    a("s_nop 1")
    a(f"{MF} {vr(S[0],16)}, {vr(K[0][0],4)}, {vr(Q[0][0],4)}, {vr(NEG[0],16)}")
    a(f"{MF} {vr(S[0],16)}, {vr(K[0][1],4)}, {vr(Q[0][1],4)}, {vr(S[0],16)}")
    a("s_nop 15")
    a(f"s_mov_b32 s{sCnt}, 4")
    if opts.get("stamp"):
        a("s_memtime s[34:35]")
        a("s_memrealtime s[36:37]")
        a("s_waitcnt lgkmcnt(0)")
    a.raw(".p2align 6")
    a.label(f"{name}_loop")

    def step(t, q):
        cur = q; oth = 1 - q
        tv = t - 1 if q == 0 else t
        tk = t if q == 0 else t + 1
        Vb = V[tv % 2]; Kb = K[tk % 2]
        E = lambda i: a(f"v_exp_f32 v{S[cur]+i}, v{S[cur]+i}")
        def C(i):
            a(f"v_cvt_pk_bf16_f32 v{P[cur]+i}, v{S[cur]+2*i}, v{S[cur]+2*i+1}")
            if opts.get("pksum"):
                l = L[cur] + 2 * (i & 1)
                a(f"v_pk_add_f32 {vr(l,2)}, {vr(l,2)}, {vr(S[cur]+2*i,2)}")
            if opts.get("addsum"):
                l = L[cur] + 2 * (i & 1)
                a(f"v_add_f32 v{l}, v{l}, v{S[cur]+2*i}")
                a(f"v_add_f32 v{l+1}, v{l+1}, v{S[cur]+2*i+1}")
            if opts.get("dotsum") and i > 0:
                a(f"v_dot2c_f32_bf16 v{L[cur]+(i&3)}, v{P[cur]+i-1}, v{vSel}")
        PVa = lambda: a(f"{MF} {vr(O[oth],16)}, {vr(Vb[0],4)}, {vr(P[oth],4)}, {vr(O[oth],16)}")
        PVb = lambda: a(f"{MF} {vr(O[oth],16)}, {vr(Vb[1],4)}, {vr(P[oth]+4,4)}, {vr(O[oth],16)}")
        QKa = lambda: a(f"{MF} {vr(S[oth],16)}, {vr(Kb[0],4)}, {vr(Q[oth][0],4)}, {'0' if opts.get('c0') else vr(NEG[oth],16)}")
        QKb = lambda: a(f"{MF} {vr(S[oth],16)}, {vr(Kb[1],4)}, {vr(Q[oth][1],4)}, {vr(S[oth],16)}")
        def SUM():
            if opts.get("nosum"):
                return
            if use_smfmac:
                a(f"v_smfmac_f32_16x16x64_bf16 {vr(L[oth],4)}, {vr(vSel,4)}, {vr(P[oth],8)}, v{vIdx}")
            else:
                a(f"v_mfma_f32_16x16x32_bf16 {vr(L[oth],4)}, {vr(vSel,4)}, {vr(P[oth],4)}, {vr(L[oth],4)}")
                a(f"v_mfma_f32_16x16x32_bf16 {vr(L[oth],4)}, {vr(vSel,4)}, {vr(P[oth]+4,4)}, {vr(L[oth],4)}")
        if q == 0:
            if t % 4 == 3:
                a("s_waitcnt vmcnt(4)")
                a("s_barrier")
            rdK(t + 1)
        else:
            a("s_waitcnt lgkmcnt(0)")
        PVa(); E(0); E(1)
        if q == 1:
            rdV(t + 1)
        E(2); QKa(); E(3); C(0); E(4); E(5); C(1); QKb(); E(6); E(7); C(2); E(8)
        PVb(); E(9); C(3); E(10); E(11); C(4); SUM(); E(12)
        if q == 0:
            dma((t + 9) % 16)
        E(13); C(5); E(14); E(15); C(6); C(7)

    for t in range(16):
        step(t, 0)
        step(t, 1)
    a(f"s_sub_u32 s{sCnt}, s{sCnt}, 1")
    a(f"s_cmp_lg_u32 s{sCnt}, 0")
    a(f"s_cbranch_scc1 {name}_loop")
    if opts.get("stamp"):
        a("s_memtime s[38:39]")
        a("s_memrealtime s[40:41]")
        a("s_waitcnt lgkmcnt(0)")
    a("s_nop 1")
    a(f"{MF} {vr(O[1],16)}, {vr(V[1][0],4)}, {vr(P[1],4)}, {vr(O[1],16)}")
    a(f"{MF} {vr(O[1],16)}, {vr(V[1][1],4)}, {vr(P[1]+4,4)}, {vr(O[1],16)}")
    if use_smfmac:
        a(f"v_smfmac_f32_16x16x64_bf16 {vr(L[1],4)}, {vr(vSel,4)}, {vr(P[1],8)}, v{vIdx}")
    else:
        a(f"v_mfma_f32_16x16x32_bf16 {vr(L[1],4)}, {vr(vSel,4)}, {vr(P[1],4)}, {vr(L[1],4)}")
        a(f"v_mfma_f32_16x16x32_bf16 {vr(L[1],4)}, {vr(vSel,4)}, {vr(P[1]+4,4)}, {vr(L[1],4)}")
    a(f"s_lshl_b32 s{sT}, s{sProb}, 6")
    a(f"s_add_u32 s{sT}, s{sT}, s{sQT}")
    a(f"s_lshl_b32 s{sT}, s{sT}, 5")
    a(f"s_add_u32 s{sT}, s{sT}, s{sHead}")
    a(f"s_lshl_b32 s{sT}, s{sT}, 11")
    a(f"s_add_u32 s{sT}, s{sT}, {WS_O}")
    a(f"s_add_u32 s{sQ}, s{sWS}, s{sT}")
    a(f"s_addc_u32 s{sQ+1}, s{sWS+1}, 0")
    a(f"s_mov_b32 s{sQ+2}, {65536+2048}")
    a(f"s_mov_b32 s{sT}, 0")
    a(f"s_mov_b32 s{sT2}, 65536")
    a(f"v_lshrrev_b32 v{vT0}, 5, v0")
    a(f"v_lshlrev_b32 v{vT0}, 10, v{vT0}")
    a(f"v_bfe_u32 v{vT1}, v0, 2, 3")
    a(f"v_lshl_add_u32 v{vT0}, v{vT1}, 6, v{vT0}")
    a(f"v_and_b32 v{vT1}, 3, v0")
    a(f"v_lshl_add_u32 v{vT0}, v{vT1}, 4, v{vT0}")
    a(f"s_lshl_b32 s{sCnt}, s{sWave}, 11")
    a(f"s_add_u32 s{sCnt}, s{sCnt}, 131072")
    a(f"v_add_u32 v{vT0}, s{sCnt}, v{vT0}")
    for ab in range(2):
        for t in range(2):
            a(f"ds_read_b64_tr_b16 {vr(K[0][ab]+2*t,2)}, v{vT0} offset:{t*512+ab*8}")
    a(f"s_and_b32 s{sCnt}, s{sIdx}, 31")
    a(f"s_lshl_b32 s{sOff}, s{sProb}, 5")
    a(f"s_add_u32 s{sCnt}, s{sCnt}, s{sOff}")
    a(f"s_lshl_b32 s{sCnt}, s{sCnt}, 5")
    a(f"s_lshr_b32 s{sOff}, s{sIdx}, 5")
    a(f"s_add_u32 s{sCnt}, s{sCnt}, s{sOff}")
    a(f"s_lshl_b32 s{sCnt}, s{sCnt}, 11")
    a(f"s_add_u32 s{sCnt}, s{sCnt}, {WS_WO}")
    a(f"s_add_u32 s{sWo}, s{sWS}, s{sCnt}")
    a(f"s_addc_u32 s{sWo+1}, s{sWS+1}, 0")
    a(f"s_mov_b32 s{sWo+2}, 2048")
    a("s_waitcnt lgkmcnt(0)")
    a(f"buffer_store_dwordx4 {vr(K[0][0],4)}, v{vOut}, {sr(sWo,4)}, 0 offen")
    a(f"buffer_store_dwordx4 {vr(K[0][1],4)}, v{vOut}, {sr(sWo,4)}, 0 offen offset:1024")
    a(f"v_bfe_u32 v{vT0}, v0, 4, 1")
    a(f"v_lshlrev_b32 v{vT0}, 10, v{vT0}")
    a(f"v_lshrrev_b32 v{vT1}, 5, v0")
    a(f"v_lshl_add_u32 v{vT0}, v{vT1}, 8, v{vT0}")
    a(f"v_and_b32 v{vT1}, 15, v0")
    a(f"v_lshl_add_u32 v{vDma}, v{vT1}, 4, v{vT0}")
    for q in range(2):
        if use_smfmac:
            a(f"v_add_f32 v{vT0}, v{L[q]}, v{L[q]+1}")
        else:
            a(f"v_mov_b32 v{vT0}, v{L[q]}")
        a(f"v_rcp_f32 v{vT0}, v{vT0}")
        a("s_nop 0")
        for i in range(16):
            a(f"v_mul_f32 v{O[q]+i}, v{O[q]+i}, v{vT0}")
        for i in range(8):
            a(f"v_cvt_pk_bf16_f32 v{P[q]+i}, v{O[q]+2*i}, v{O[q]+2*i+1}")
        so = sT if q == 0 else sT2
        a(f"buffer_store_dwordx4 {vr(P[q],4)}, v{vDma}, {sr(sQ,4)}, s{so} offen")
        a(f"buffer_store_dwordx4 {vr(P[q]+4,4)}, v{vDma}, {sr(sQ,4)}, s{so} offen offset:512")
    if opts.get("stamp"):
        a("s_waitcnt vmcnt(0)")
        a("s_memrealtime s[42:43]")
        a("s_waitcnt lgkmcnt(0)")
        a("s_sub_u32 s38, s38, s34")
        a(f"v_mov_b32 v{S[0]}, s38")
        a(f"v_mov_b32 v{S[0]+1}, s32")
        a(f"v_mov_b32 v{S[0]+2}, s36")
        a(f"v_mov_b32 v{S[0]+3}, s40")
        a(f"v_mov_b32 v{S[0]+4}, s42")
        a(f"s_lshl_b32 s{sT}, s2, 3")
        a(f"s_add_u32 s{sT}, s{sT}, s{sWave}")
        a(f"s_lshl_b32 s{sT}, s{sT}, 5")
        a(f"s_add_u32 s{sT}, s{sT}, {40<<20}")
        a(f"v_mov_b32 v{vT0}, s{sT}")
        a(f"global_store_dwordx4 v{vT0}, {vr(S[0],4)}, {sr(sWS,2)}")
        a(f"global_store_dword v{vT0}, v{S[0]+4}, {sr(sWS,2)} offset:16")
    a.label(f"{name}_end")
    a("s_endpgm")
    nva = (nv + 3) // 4 * 4
    return a.text(), kernel_desc(name, nv, 48, nva), dict(grid=256, block=512, lds=131072+16384)
```

```python
class Asm:
    def __init__(self):
        self.lines = []
    def __call__(self, s):
        self.lines.append("    " + s)
    def label(self, s):
        self.lines.append(s + ":")
    def raw(self, s):
        self.lines.append(s)
    def comment(self, s):
        self.lines.append("    ; " + s)
    def text(self):
        return "\n".join(self.lines) + "\n"

class RegAlloc:
    def __init__(self, start=0, limit=256):
        self.n = start
        self.limit = limit
    def alloc(self, cnt=1, align=1):
        self.n = (self.n + align - 1) // align * align
        r = self.n
        self.n += cnt
        assert self.n <= self.limit, f"out of regs {self.n}"
        return r

def vr(base, cnt=1, p="v"):
    if cnt == 1:
        return f"{p}{base}"
    return f"{p}[{base}:{base+cnt-1}]"

def sr(base, cnt=1):
    return vr(base, cnt, "s")

def kernel_header(a, name):
    a.raw(f".globl {name}")
    a.raw(".p2align 8")
    a.raw(f".type {name},@function")
    a.label(name)

def kernel_desc(name, nvgpr, nsgpr, accum):
    return f""".section .rodata,"a"
.p2align 6
.amdhsa_kernel {name}
  .amdhsa_next_free_vgpr {nvgpr}
  .amdhsa_next_free_sgpr {nsgpr}
  .amdhsa_accum_offset {accum}
  .amdhsa_group_segment_fixed_size 0
  .amdhsa_kernarg_size 72
  .amdhsa_user_sgpr_count 2
  .amdhsa_user_sgpr_kernarg_segment_ptr 1
  .amdhsa_system_sgpr_workgroup_id_x 1
.end_amdhsa_kernel
.text
"""

WS_Q = 0
WS_KV = 8 << 20
WS_O = 24 << 20
WS_WO = 32 << 20
```

```python
from common import *
M16 = "v_mfma_f32_16x16x32_bf16"
SLOT = 32768; NR = 5

def gen_out(name="out_kernel", opts=None):
    opts = opts or {}
    a = Asm()
    kernel_header(a, name)
    R = RegAlloc(1)
    vT0 = R.alloc(); vO = R.alloc(); vWo = R.alloc(); vL = R.alloc()
    FO = [[R.alloc(4, 4) for i in range(4)] for b in range(2)]
    FW = [[R.alloc(4, 4) for i in range(4)] for b in range(2)]
    ACC = [[R.alloc(4, 4) for i in range(4)] for j in range(4)]
    nv = R.n
    sA = 4; sB = 8; sOut = 12; sP = 16
    sWS = 20
    sWave = 22; sProb = 23; sMt = 24; sNt = 25; sT = 26; sT2 = 27
    sK = 28; sWr = 29; sRd = 30; sD = 31; sCnt = 32; sCS = 33; sW4 = 34
    a("s_cmp_ge_u32 s2, 256")
    a(f"s_cbranch_scc1 {name}_end")
    if opts.get("stamp"):
        a("s_memrealtime s[48:49]")
    a(f"s_load_dwordx2 {sr(sP,2)}, s[0:1], 48")
    a(f"s_load_dwordx2 {sr(sWS,2)}, s[0:1], 64")
    a(f"v_lshrrev_b32 v{vT0}, 6, v0")
    a("v_and_b32 v0, 63, v0")
    a(f"v_readfirstlane_b32 s{sWave}, v{vT0}")
    a(f"s_and_b32 s{sT}, s2, 7")
    a(f"s_lshr_b32 s{sProb}, s{sT}, 2")
    a(f"s_and_b32 s{sT}, s{sT}, 3")
    a(f"s_lshl_b32 s{sT}, s{sT}, 2")
    a(f"s_lshr_b32 s{sT2}, s2, 6")
    a(f"s_add_u32 s{sMt}, s{sT}, s{sT2}")
    a(f"s_lshr_b32 s{sNt}, s2, 3")
    a(f"s_and_b32 s{sNt}, s{sNt}, 7")
    a(f"v_lshlrev_b32 v{vL}, 4, v0")
    a(f"s_and_b32 s{sW4}, s{sWave}, 3")
    a(f"s_mov_b32 s{sCS}, {SLOT}")
    a(f"s_cmp_ge_u32 s{sWave}, 4")
    a(f"s_cbranch_scc1 {name}_loader")
    a(f"s_and_b32 s{sT}, s{sWave}, 1")
    a(f"s_lshl_b32 s{sT}, s{sT}, 13")
    a(f"v_add_u32 v{vO}, s{sT}, v{vL}")
    a(f"s_lshr_b32 s{sT}, s{sWave}, 1")
    a(f"s_lshl_b32 s{sT}, s{sT}, 13")
    a(f"s_add_u32 s{sT}, s{sT}, 16384")
    a(f"v_add_u32 v{vWo}, s{sT}, v{vL}")
    for j in range(4):
        for i in range(4):
            for r in range(4):
                a(f"v_mov_b32 v{ACC[j][i]+r}, 0")
    a(f"s_mov_b32 s{sRd}, 0")
    a("s_waitcnt lgkmcnt(0)")
    a(f"s_lshl_b32 s{sT}, s{sMt}, 1")
    a(f"s_and_b32 s{sT2}, s{sWave}, 1")
    a(f"s_add_u32 s{sT}, s{sT}, s{sT2}")
    a(f"s_lshl_b32 s{sT}, s{sT}, 18")
    a(f"s_lshl_b32 s{sT2}, s{sProb}, 11")
    a(f"s_add_u32 s{sT}, s{sT}, s{sT2}")
    a(f"s_lshl_b32 s{sT2}, s{sNt}, 8")
    a(f"s_add_u32 s{sT}, s{sT}, s{sT2}")
    a(f"s_lshr_b32 s{sT2}, s{sWave}, 1")
    a(f"s_lshl_b32 s{sT2}, s{sT2}, 7")
    a(f"s_add_u32 s{sT}, s{sT}, s{sT2}")
    a(f"s_add_u32 s{sOut}, s{sP}, s{sT}")
    a(f"s_addc_u32 s{sOut+1}, s{sP+1}, 0")
    a(f"s_sub_u32 s{sOut+2}, {2048*4096}, s{sT}")
    a(f"s_mov_b32 s{sOut+3}, 0x20000")
    a("s_barrier")
    if opts.get("stamp"):
        a("s_memtime s[50:51]")
        a("s_memrealtime s[52:53]")
        a("s_waitcnt lgkmcnt(0)")
    def rd(b, s, k):
        if k < 4:
            i = k
            a(f"ds_read_b128 {vr(FO[b][i],4)}, v{vO} offset:{(i>>1)*4096+s*2048+(i&1)*1024}")
        else:
            i = k - 4
            a(f"ds_read_b128 {vr(FW[b][i],4)}, v{vWo} offset:{(i>>1)*4096+s*2048+(i&1)*1024}")
    order = [0, 4, 1, 5, 2, 6, 3, 7]
    for k in order: rd(0, 0, k)
    def substep(par, barrier=False, prefetch=True):
        b = par
        a("s_waitcnt lgkmcnt(0)")
        if barrier:
            a("s_barrier")
            a(f"s_add_u32 s{sRd}, s{sRd}, {SLOT}")
            a(f"s_cmp_ge_u32 s{sRd}, {NR*SLOT}")
            a(f"s_cselect_b32 s{sD}, {(-(NR-1)*SLOT) & 0xffffffff}, s{sCS}")
            a(f"s_cselect_b32 s{sRd}, 0, s{sRd}")
            a(f"v_add_u32 v{vO}, s{sD}, v{vO}")
            a(f"v_add_u32 v{vWo}, s{sD}, v{vWo}")
        n = 0
        for j in range(4):
            for i in range(4):
                a(f"{M16} {vr(ACC[j][i],4)}, {vr(FW[b][j],4)}, {vr(FO[b][i],4)}, {vr(ACC[j][i],4)}")
                if prefetch and n < 8:
                    rd(1 - b, 1 - par, order[n])
                n += 1
    substep(0)
    a(f"s_mov_b32 s{sCnt}, 15")
    a.raw(".p2align 6")
    a.label(f"{name}_loop")
    substep(1, barrier=True)
    substep(0)
    a(f"s_sub_u32 s{sCnt}, s{sCnt}, 1")
    a(f"s_cmp_lg_u32 s{sCnt}, 0")
    a(f"s_cbranch_scc1 {name}_loop")
    substep(1, prefetch=False)
    if opts.get("stamp"):
        a("s_memtime s[54:55]")
        a("s_memrealtime s[56:57]")
        a("s_waitcnt lgkmcnt(0)")
    a(f"v_and_b32 v{vT0}, 15, v0")
    a(f"v_lshlrev_b32 v{vO}, 12, v{vT0}")
    a(f"v_lshrrev_b32 v{vT0}, 4, v0")
    a(f"v_lshl_add_u32 v{vO}, v{vT0}, 4, v{vO}")
    a(f"s_mov_b32 s{sT}, 0")
    a("s_nop 7")
    tmp = [FO[0][0], FO[0][1], FO[0][2], FO[0][3], FW[0][0], FW[0][1], FW[0][2], FW[0][3]]
    n = 0
    for i in range(4):
        for G in range(2):
            d = tmp[n]; n += 1
            lo, hi = ACC[2*G][i], ACC[2*G+1][i]
            a(f"v_cvt_pk_bf16_f32 v{d}, v{lo}, v{lo+1}")
            a(f"v_cvt_pk_bf16_f32 v{d+1}, v{lo+2}, v{lo+3}")
            a(f"v_cvt_pk_bf16_f32 v{d+2}, v{hi}, v{hi+1}")
            a(f"v_cvt_pk_bf16_f32 v{d+3}, v{hi+2}, v{hi+3}")
            a(f"buffer_store_dwordx4 {vr(d,4)}, v{vO}, {sr(sOut,4)}, s{sT} offen offset:{G*64}")
        if i < 3:
            a(f"s_add_u32 s{sT}, s{sT}, {16*4096}")
    if opts.get("stamp"):
        a("s_waitcnt vmcnt(0)")
        a("s_memrealtime s[58:59]")
        a("s_waitcnt lgkmcnt(0)")
        a("s_sub_u32 s54, s54, s50")
        z = ACC[0][0]
        a(f"v_mov_b32 v{z}, s54")
        a(f"v_mov_b32 v{z+1}, s48")
        a(f"v_mov_b32 v{z+2}, s52")
        a(f"v_mov_b32 v{z+3}, s56")
        a(f"v_mov_b32 v{z+4}, s58")
        a(f"s_lshl_b32 s{sT}, s2, 2")
        a(f"s_add_u32 s{sT}, s{sT}, s{sWave}")
        a(f"s_lshl_b32 s{sT}, s{sT}, 5")
        a(f"s_add_u32 s{sT}, s{sT}, {40<<20}")
        a(f"v_mov_b32 v{vT0}, s{sT}")
        a(f"global_store_dwordx4 v{vT0}, {vr(z,4)}, {sr(sWS,2)}")
        a(f"global_store_dword v{vT0}, v{z+4}, {sr(sWS,2)} offset:16")
    a("s_endpgm")
    a.label(f"{name}_loader")
    a("s_waitcnt lgkmcnt(0)")
    a(f"s_lshl_b32 s{sT}, s{sProb}, 6")
    a(f"s_lshl_b32 s{sT2}, s{sMt}, 2")
    a(f"s_add_u32 s{sT}, s{sT}, s{sT2}")
    a(f"s_add_u32 s{sT}, s{sT}, s{sW4}")
    a(f"s_lshl_b32 s{sT}, s{sT}, 16")
    a(f"s_add_u32 s{sT}, s{sT}, {WS_O}")
    a(f"s_add_u32 s{sA}, s{sWS}, s{sT}")
    a(f"s_addc_u32 s{sA+1}, s{sWS+1}, 0")
    a(f"s_mov_b32 s{sA+2}, 65536")
    a(f"s_mov_b32 s{sA+3}, 0x20000")
    a(f"s_lshl_b32 s{sT}, s{sProb}, 5")
    a(f"s_lshl_b32 s{sT2}, s{sNt}, 2")
    a(f"s_add_u32 s{sT}, s{sT}, s{sT2}")
    a(f"s_add_u32 s{sT}, s{sT}, s{sW4}")
    a(f"s_lshl_b32 s{sT}, s{sT}, 16")
    a(f"s_add_u32 s{sT}, s{sT}, {WS_WO}")
    a(f"s_add_u32 s{sB}, s{sWS}, s{sT}")
    a(f"s_addc_u32 s{sB+1}, s{sWS+1}, 0")
    a(f"s_mov_b32 s{sB+2}, 65536")
    a(f"s_mov_b32 s{sB+3}, 0x20000")
    a(f"s_mov_b32 s{sK}, 0")
    a(f"s_lshl_b32 s{sW4}, s{sW4}, 12")
    def stage(slot):
        a(f"s_add_u32 m0, s{sW4}, {slot*SLOT}")
        a("s_nop 0")
        for n in range(4):
            a(f"buffer_load_dwordx4 v{vL}, {sr(sA,4)}, s{sK} offen offset:{n*1024} lds")
        a(f"s_add_u32 m0, s{sW4}, {slot*SLOT+16384}")
        a("s_nop 0")
        for n in range(4):
            a(f"buffer_load_dwordx4 v{vL}, {sr(sB,4)}, s{sK} offen offset:{n*1024} lds")
        a(f"s_add_u32 s{sK}, s{sK}, 4096")
    for s in range(NR): stage(s)
    a(f"s_waitcnt vmcnt({(NR-1)*8})")
    a("s_barrier")
    for S in range(15):
        allowed = (min(S + NR - 1, 15) - (S + 1)) * 8
        a(f"s_waitcnt vmcnt({allowed})")
        a("s_barrier")
        if S + NR <= 15:
            stage(S % NR)
    a.label(f"{name}_end")
    a("s_endpgm")
    nva = (nv + 3) // 4 * 4
    print("out vgprs", nv)
    return a.text(), kernel_desc(name, nv, 64, nva), dict(grid=256, block=512, lds=NR * SLOT)
```

```python
from common import *
import struct

QSCALE = (32 ** -0.5) * 1.4426950408889634
def f32bits(x): return struct.unpack("<I", struct.pack("<f", x))[0]

XSLOT = 32768; WBASE = 98304; WSLOT = 12288
M16 = "v_mfma_f32_16x16x32_bf16"

def gen_qkv(name="qkv_kernel", opts=None):
    opts = opts or {}
    a = Asm()
    kernel_header(a, name)
    R = RegAlloc(1)
    vT0 = R.alloc(); vXa = [R.alloc(), R.alloc()]; vWa = [R.alloc(), R.alloc()]
    vDx = R.alloc(); vDw = R.alloc()
    X = [[R.alloc(4, 4) for i in range(4)] for b in range(2)]
    W = [R.alloc(4, 4) for j in range(6)]
    ACC = [[R.alloc(4, 4) for i in range(4)] for j in range(6)]
    nv = R.n
    sX = 4
    sW = 8
    sO = 12
    sP = 16
    sWS = 20
    sWave = 22; sProb = 23; sJ = 24; sM = 25; sT = 26; sT2 = 27
    sXk = 28
    sWk = 29
    sXrd = 30
    sXw = 31
    sWrd = 32
    sWw = 33
    sWm = 34
    sCnt = 35; sD = 36; sW1k = 37; sCW = 38; sCX = 39

    a("s_cmp_ge_u32 s2, 256")
    a(f"s_cbranch_scc1 {name}_end")
    if opts.get("stamp"):
        a("s_memrealtime s[48:49]")
    a(f"s_and_b32 s{sT}, s2, 7")
    a(f"s_lshr_b32 s{sProb}, s{sT}, 2")
    a(f"s_mul_i32 s{sT2}, s{sProb}, 24")
    a(f"s_add_u32 s0, s0, s{sT2}")
    a("s_addc_u32 s1, s1, 0")
    a(f"s_load_dwordx4 {sr(sP,4)}, s[0:1], 0")
    a(f"s_sub_u32 s0, s0, s{sT2}")
    a("s_subb_u32 s1, s1, 0")
    a(f"s_load_dwordx2 {sr(sWS,2)}, s[0:1], 64")
    a(f"v_lshrrev_b32 v{vT0}, 6, v0")
    a("v_and_b32 v0, 63, v0")
    a(f"v_readfirstlane_b32 s{sWave}, v{vT0}")
    a(f"s_and_b32 s{sT}, s{sT}, 3")
    a(f"s_lshl_b32 s{sT}, s{sT}, 2")
    a(f"s_lshr_b32 s{sT2}, s2, 3")
    a(f"s_lshr_b32 s{sM}, s{sT2}, 2")
    a(f"s_and_b32 s{sT2}, s{sT2}, 3")
    a(f"s_add_u32 s{sJ}, s{sT}, s{sT2}")
    t1 = X[0][0]; t2 = X[0][0] + 1; t3 = X[0][0] + 2
    a(f"s_and_b32 s{sT}, s{sWave}, 1")
    a(f"s_lshl_b32 s{sT}, s{sT}, 2")
    a(f"v_lshrrev_b32 v{t1}, 4, v0")
    a(f"v_add_u32 v{t1}, s{sT}, v{t1}")
    a(f"v_and_b32 v{t2}, 7, v0")
    a(f"v_xor_b32 v{t1}, v{t1}, v{t2}")
    a(f"v_lshlrev_b32 v{t1}, 4, v{t1}")
    a(f"v_lshrrev_b32 v{t3}, 3, v0")
    a(f"s_lshl_b32 s{sT}, s{sWave}, 3")
    a(f"v_add_u32 v{t3}, s{sT}, v{t3}")
    a(f"v_lshl_add_u32 v{vDx}, v{t3}, 11, v{t1}")
    a(f"v_bfe_u32 v{t1}, v0, 4, 1")
    a(f"s_and_b32 s{sT}, s{sWave}, 1")
    a(f"s_lshl_b32 s{sT}, s{sT}, 1")
    a(f"v_or_b32 v{t1}, s{sT}, v{t1}")
    a(f"v_lshlrev_b32 v{t1}, 1, v{t1}")
    a(f"v_xor_b32 v{t1}, v{t1}, v{t2}")
    a(f"v_lshlrev_b32 v{t1}, 4, v{t1}")
    a(f"v_mul_u32_u24 v{t3}, 6144, v{t3}")
    a(f"v_add_u32 v{vDw}, v{t3}, v{t1}")
    a(f"v_lshrrev_b32 v{t1}, 4, v0")
    a(f"v_bfe_u32 v{t2}, v0, 1, 3")
    a(f"v_xor_b32 v{t1}, v{t1}, v{t2}")
    a(f"v_lshlrev_b32 v{t1}, 4, v{t1}")
    a(f"v_and_b32 v{t2}, 15, v0")
    a(f"v_lshl_add_u32 v{t1}, v{t2}, 7, v{t1}")
    a(f"s_and_b32 s{sT}, s{sWave}, 3")
    a(f"s_lshl_b32 s{sT}, s{sT}, 13")
    a(f"v_add_u32 v{vXa[0]}, s{sT}, v{t1}")
    a(f"v_xor_b32 v{vXa[1]}, 64, v{vXa[0]}")
    a(f"v_bfe_u32 v{t1}, v0, 3, 2")
    a(f"s_lshr_b32 s{sT}, s{sWave}, 2")
    a(f"s_lshl_b32 s{sT}, s{sT}, 1")
    a(f"v_xor_b32 v{t1}, s{sT}, v{t1}")
    a(f"v_lshlrev_b32 v{t1}, 5, v{t1}")
    a(f"v_and_b32 v{t2}, 3, v0")
    a(f"v_lshl_add_u32 v{t1}, v{t2}, 3, v{t1}")
    a(f"v_lshrrev_b32 v{t2}, 4, v0")
    a(f"v_lshl_add_u32 v{t1}, v{t2}, 10, v{t1}")
    a(f"v_bfe_u32 v{t2}, v0, 2, 2")
    a(f"v_lshl_add_u32 v{t1}, v{t2}, 7, v{t1}")
    a(f"v_add_u32 v{vWa[0]}, {WBASE}, v{t1}")
    a(f"v_xor_b32 v{vWa[1]}, 32, v{vWa[0]}")
    a(f"s_lshl_b32 s{sW1k}, s{sWave}, 10")
    a(f"s_and_b32 s{sT}, s{sWave}, 3")
    a(f"s_lshl_b32 s{sT}, s{sT}, 10")
    a(f"s_add_u32 s{sWm}, s{sT}, {WBASE}")
    a(f"s_lshr_b32 s{sT}, s{sWave}, 2")
    a(f"s_mul_i32 s{sWw}, s{sT}, {WSLOT}")
    a("s_waitcnt lgkmcnt(0)")
    a(f"s_lshl_b32 s{sT}, s{sM}, 19")
    a(f"s_add_u32 s{sX}, s{sP}, s{sT}")
    a(f"s_addc_u32 s{sX+1}, s{sP+1}, 0")
    a(f"s_mov_b32 s{sX+2}, {256*2048}")
    a(f"s_mov_b32 s{sX+3}, 0x20000")
    a(f"s_lshl_b32 s{sT}, s{sJ}, 7")
    a(f"s_add_u32 s{sW}, s{sP+2}, s{sT}")
    a(f"s_addc_u32 s{sW+1}, s{sP+3}, 0")
    a(f"s_sub_u32 s{sW+2}, {1024*6144}, s{sT}")
    a(f"s_mov_b32 s{sW+3}, 0x20000")
    a(f"s_mov_b32 s{sCW}, {WSLOT}")
    a(f"s_mov_b32 s{sCX}, {XSLOT}")
    a(f"s_mov_b32 s{sXk}, 0")
    a(f"s_mov_b32 s{sWk}, 0")
    a(f"s_mov_b32 s{sXw}, s{sW1k}")

    def dma_x(n):
        a(f"s_add_u32 m0, s{sXw}, {n*8192}")
        a(f"s_add_u32 s{sT}, s{sXk}, {n*131072}")
        a(f"buffer_load_dwordx4 v{vDx}, {sr(sX,4)}, s{sT} offen lds")
    def adv_x():
        a(f"s_add_u32 s{sXk}, s{sXk}, 128")
    def dma_w(seg):
        if seg == 0:
            a(f"s_add_u32 s{sT2}, s{sWm}, s{sWw}")
        a(f"s_add_u32 m0, s{sT2}, {seg*4096}")
        a(f"s_add_u32 s{sT}, s{sWk}, {seg*2048}")
        a(f"buffer_load_dwordx4 v{vDw}, {sr(sW,4)}, s{sT} offen lds")
    def adv_w():
        a(f"s_add_u32 s{sWk}, s{sWk}, {64*6144}")
        a(f"s_add_u32 s{sWw}, s{sWw}, {2*WSLOT}")
        a(f"s_sub_u32 s{sT}, s{sWw}, {5*WSLOT}")
        a(f"s_cmp_ge_u32 s{sWw}, {5*WSLOT}")
        a(f"s_cselect_b32 s{sWw}, s{sT}, s{sWw}")
    for n in range(4): dma_x(n)
    adv_x()
    for s in range(3): dma_w(s)
    adv_w()
    for s in range(3): dma_w(s)
    adv_w()
    a(f"s_add_u32 s{sXw}, s{sW1k}, {XSLOT}")
    for n in range(4): dma_x(n)
    adv_x()
    a(f"s_add_u32 s{sXw}, s{sW1k}, {2*XSLOT}")
    for n in range(4): dma_x(n)
    adv_x()
    for j in range(6):
        for i in range(4):
            for r in range(4):
                a(f"v_mov_b32 v{ACC[j][i]+r}, 0")
    a(f"s_mov_b32 s{sXrd}, 0")
    a(f"s_mov_b32 s{sWrd}, 0")
    a("s_waitcnt vmcnt(11)")
    a("s_barrier")
    if opts.get("stamp"):
        a("s_memtime s[50:51]")
        a("s_memrealtime s[52:53]")
        a("s_waitcnt lgkmcnt(0)")

    def rdX(b, s):
        for i in range(4):
            a(f"ds_read_b128 {vr(X[b][i],4)}, v{vXa[s]} offset:{i*2048}")
    def rdW(j):
        seg, ft = j >> 1, j & 1
        for t in range(2):
            a(f"ds_read_b64_tr_b16 {vr(W[j]+2*t,2)}, v{vWa[ft]} offset:{seg*4096+t*512}")
    def advWrd():
        a(f"s_add_u32 s{sWrd}, s{sWrd}, {WSLOT}")
        a(f"s_cmp_ge_u32 s{sWrd}, {5*WSLOT}")
        a(f"s_cselect_b32 s{sD}, {(-4*WSLOT) & 0xffffffff}, s{sCW}")
        a(f"s_cselect_b32 s{sWrd}, 0, s{sWrd}")
        a(f"v_add_u32 v{vWa[0]}, s{sD}, v{vWa[0]}")
        a(f"v_add_u32 v{vWa[1]}, s{sD}, v{vWa[1]}")
    def advXrd():
        a(f"s_add_u32 s{sXw}, s{sXrd}, s{sW1k}")
        a(f"s_add_u32 s{sXrd}, s{sXrd}, {XSLOT}")
        a(f"s_cmp_ge_u32 s{sXrd}, {3*XSLOT}")
        a(f"s_cselect_b32 s{sD}, {(-2*XSLOT) & 0xffffffff}, s{sCX}")
        a(f"s_cselect_b32 s{sXrd}, 0, s{sXrd}")
        a(f"v_add_u32 v{vXa[0]}, s{sD}, v{vXa[0]}")
        a(f"v_add_u32 v{vXa[1]}, s{sD}, v{vXa[1]}")
    def mf(j, i, b):
        if j < 4:
            a(f"{M16} {vr(ACC[j][i],4)}, {vr(W[j],4)}, {vr(X[b][i],4)}, {vr(ACC[j][i],4)}")
        else:
            a(f"{M16} {vr(ACC[j][i],4)}, {vr(X[b][i],4)}, {vr(W[j],4)}, {vr(ACC[j][i],4)}")

    rdX(0, 0)
    for j in range(6): rdW(j)

    def substep(par, barrier=None, dmaw=False, dmax=False, prefetch=True):
        b = par
        a("s_waitcnt lgkmcnt(10)" if prefetch or True else "")
        if barrier is not None:
            a(f"s_waitcnt vmcnt({barrier})")
            a("s_barrier")
        if prefetch:
            if par == 1:
                advXrd()
            advWrd()
            rdX(1 - b, 1 - par)
        dm = []
        if dmaw: dm += [lambda s=s: dma_w(s) for s in range(3)] + [adv_w]
        if dmax: dm += [lambda n=n: dma_x(n) for n in range(4)] + [adv_x]
        for j in range(6):
            if j > 0:
                a(f"s_waitcnt lgkmcnt({14 if prefetch else 10-2*j})")
            for i in range(4):
                mf(j, i, b)
                if i in (1, 3) and dm:
                    dm.pop(0)()
            if prefetch:
                rdW(j)
        while dm: dm.pop(0)()

    substep(0)
    a(f"s_mov_b32 s{sCnt}, 13")
    a.raw(".p2align 6")
    a.label(f"{name}_loop")
    substep(1, barrier=4, dmaw=True, dmax=True)
    substep(0)
    a(f"s_sub_u32 s{sCnt}, s{sCnt}, 1")
    a(f"s_cmp_lg_u32 s{sCnt}, 0")
    a(f"s_cbranch_scc1 {name}_loop")
    substep(1, barrier=4, dmaw=True)
    substep(0)
    substep(1, barrier=0)
    substep(0)
    substep(1, prefetch=False)
    if opts.get("stamp"):
        a("s_memtime s[54:55]")
        a("s_memrealtime s[56:57]")
        a("s_waitcnt lgkmcnt(0)")
    a(f"s_lshl_b32 s{sT}, s{sProb}, 5")
    a(f"s_lshl_b32 s{sT2}, s{sJ}, 1")
    a(f"s_add_u32 s{sT}, s{sT}, s{sT2}")
    a(f"s_lshr_b32 s{sT2}, s{sWave}, 2")
    a(f"s_add_u32 s{sT}, s{sT}, s{sT2}")
    a(f"s_lshl_b32 s{sT}, s{sT}, 6")
    a(f"s_lshl_b32 s{sT2}, s{sM}, 3")
    a(f"s_add_u32 s{sT}, s{sT}, s{sT2}")
    a(f"s_and_b32 s{sT2}, s{sWave}, 3")
    a(f"s_lshl_b32 s{sT2}, s{sT2}, 1")
    a(f"s_add_u32 s{sT}, s{sT}, s{sT2}")
    a(f"s_lshl_b32 s{sT2}, s{sT}, 11")
    a(f"s_add_u32 s{sT2}, s{sT2}, {WS_Q}")
    a(f"s_add_u32 s{sX}, s{sWS}, s{sT2}")
    a(f"s_addc_u32 s{sX+1}, s{sWS+1}, 0")
    a(f"s_mov_b32 s{sX+2}, 4096")
    a(f"s_lshl_b32 s{sT2}, s{sT}, 12")
    a(f"s_add_u32 s{sT2}, s{sT2}, {WS_KV}")
    a(f"s_add_u32 s{sW}, s{sWS}, s{sT2}")
    a(f"s_addc_u32 s{sW+1}, s{sWS+1}, 0")
    a(f"s_mov_b32 s{sW+2}, 8192")
    a(f"s_mov_b32 s{sD}, {f32bits(QSCALE):#x}")
    a(f"s_mov_b32 s{sT}, 4096")
    vA = vXa[0]; vB = vXa[1]; u1 = vWa[0]; u2 = vWa[1]
    a(f"v_lshrrev_b32 v{u1}, 5, v0")
    a(f"v_lshlrev_b32 v{u1}, 10, v{u1}")
    a(f"v_bfe_u32 v{u2}, v0, 4, 1")
    a(f"v_lshl_add_u32 v{u1}, v{u2}, 9, v{u1}")
    a(f"v_and_b32 v{u2}, 15, v0")
    a(f"v_lshl_add_u32 v{vA}, v{u2}, 4, v{u1}")
    a(f"v_and_b32 v{u2}, 7, v0")
    a(f"v_lshl_add_u32 v{vB}, v{u2}, 4, v{u1}")
    a(f"v_bfe_u32 v{u2}, v0, 3, 1")
    a(f"v_lshl_add_u32 v{vB}, v{u2}, 8, v{vB}")
    a("s_nop 7")
    tmp = [X[0][0], X[0][1], X[0][2], X[0][3], X[1][0], X[1][1], X[1][2], X[1][3], W[0], W[1], W[2], W[3]]
    n = 0
    st = opts.get("stflags", "")
    for i in range(4):
        d = tmp[n]; n += 1
        lo, hi = ACC[2][i], ACC[3][i]
        a(f"v_cvt_pk_bf16_f32 v{d}, v{lo}, v{lo+1}")
        a(f"v_cvt_pk_bf16_f32 v{d+1}, v{lo+2}, v{lo+3}")
        a(f"v_cvt_pk_bf16_f32 v{d+2}, v{hi}, v{hi+1}")
        a(f"v_cvt_pk_bf16_f32 v{d+3}, v{hi+2}, v{hi+3}")
        so = "0" if i < 2 else f"s{sT}"
        a(f"buffer_store_dwordx4 {vr(d,4)}, v{vB}, {sr(sW,4)}, {so} offen offset:{(i&1)*128}{st}")
    for T in range(2):
        for ft in range(2):
            d = tmp[n]; n += 1
            lo, hi = ACC[4+ft][2*T], ACC[4+ft][2*T+1]
            a(f"v_cvt_pk_bf16_f32 v{d}, v{lo}, v{lo+1}")
            a(f"v_cvt_pk_bf16_f32 v{d+1}, v{lo+2}, v{lo+3}")
            a(f"v_cvt_pk_bf16_f32 v{d+2}, v{hi}, v{hi+1}")
            a(f"v_cvt_pk_bf16_f32 v{d+3}, v{hi+2}, v{hi+3}")
            so = "0" if T == 0 else f"s{sT}"
            a(f"buffer_store_dwordx4 {vr(d,4)}, v{vA}, {sr(sW,4)}, {so} offen offset:{2048+ft*256}{st}")
    for i in range(4):
        d = tmp[n]; n += 1
        lo, hi = ACC[0][i], ACC[1][i]
        for r in range(4):
            a(f"v_mul_f32 v{lo+r}, s{sD}, v{lo+r}")
            a(f"v_mul_f32 v{hi+r}, s{sD}, v{hi+r}")
        a(f"v_cvt_pk_bf16_f32 v{d}, v{lo}, v{lo+1}")
        a(f"v_cvt_pk_bf16_f32 v{d+1}, v{lo+2}, v{lo+3}")
        a(f"v_cvt_pk_bf16_f32 v{d+2}, v{hi}, v{hi+1}")
        a(f"v_cvt_pk_bf16_f32 v{d+3}, v{hi+2}, v{hi+3}")
        a(f"buffer_store_dwordx4 {vr(d,4)}, v{vA}, {sr(sX,4)}, 0 offen offset:{(i>>1)*2048+(i&1)*256}{st}")
    if opts.get("stamp"):
        a("s_waitcnt vmcnt(0)")
        a("s_memrealtime s[58:59]")
        a("s_waitcnt lgkmcnt(0)")
        a("s_sub_u32 s54, s54, s50")
        z = ACC[0][0]
        a(f"v_mov_b32 v{z}, s54")
        a(f"v_mov_b32 v{z+1}, s48")
        a(f"v_mov_b32 v{z+2}, s52")
        a(f"v_mov_b32 v{z+3}, s56")
        a(f"v_mov_b32 v{z+4}, s58")
        a(f"s_lshl_b32 s{sT}, s2, 3")
        a(f"s_add_u32 s{sT}, s{sT}, s{sWave}")
        a(f"s_lshl_b32 s{sT}, s{sT}, 5")
        a(f"s_add_u32 s{sT}, s{sT}, {40<<20}")
        a(f"v_mov_b32 v{vT0}, s{sT}")
        a(f"global_store_dwordx4 v{vT0}, {vr(z,4)}, {sr(sWS,2)}")
        a(f"global_store_dword v{vT0}, v{z+4}, {sr(sWS,2)} offset:16")
    a.label(f"{name}_end")
    a("s_endpgm")
    nva = (nv + 3) // 4 * 4
    print("qkv vgprs", nv)
    return a.text(), kernel_desc(name, nv, 64, nva), dict(grid=256, block=512, lds=WBASE + 5 * WSLOT)
```

```python
from build import build
from qkv import gen_qkv
from attn import gen_attn
from outp import gen_out
k1 = gen_qkv("qkv_kernel"); k2 = gen_attn("attn_kernel"); k3 = gen_out("out_kernel")
build([("qkv_kernel",) + k1, ("attn_kernel",) + k2, ("out_kernel",) + k3], "full.s")
build([("attn_kernel",) + gen_attn("attn_kernel", opts=dict(stamp=1))], "a_sm.s")
build([("out_kernel",) + gen_out("out_kernel", opts=dict(stamp=1))], "o_a.s")
```
